```python
import torch

def _softmax(x, axis=-1):
    return torch.softmax(x, dim=axis)
def _gelu(x):
    return torch.nn.functional.gelu(x, approximate="tanh")
def _silu(x):
    return torch.nn.functional.silu(x)
def _sigmoid(x):
    return torch.sigmoid(x)
def _layernorm(x, axis=-1, eps=1e-5):
    m = x.mean(dim=axis, keepdim=True)
    v = x.var(dim=axis, keepdim=True, unbiased=False)
    return (x - m) / torch.sqrt(v + eps)
def _scatter_add(tgt, idx, src, axis=0):
    return tgt.clone().index_add_(axis, idx, src)
def _segment_sum(src, seg, n):
    out = torch.zeros((n,) + src.shape[1:], dtype=src.dtype)
    return out.index_add_(0, seg, src)
def _pad(x, pw):
    flat = tuple(v for pair in reversed(pw) for v in pair)
    return torch.nn.functional.pad(x, flat)

kernel_name = 'interleave_layers__sliding_block__linear_attn_block__prompt'

def setup_inputs():

    _w = (lambda a: (lambda t: t.to(torch.bfloat16) if t.is_floating_point() else t)(torch.as_tensor(a)))
    def _A_setup():
        B, S, D = 1, 2048, 512
        return {
            "x": _w((lambda *s: torch.randn(*s, dtype=torch.bfloat16) * 0.05)(B, S, D)),
            "wqkv": _w((lambda *s: torch.randn(*s, dtype=torch.bfloat16) * 0.1)(D, 3 * D)),
            "wo": _w((lambda *s: torch.randn(*s, dtype=torch.bfloat16) * 0.1)(D, D)),
        }
    _A_in = _A_setup()

    def _B_setup():
        B, S, D = 1, 2048, 512
        return {
            "x": _w((lambda *s: torch.randn(*s, dtype=torch.bfloat16) * 0.05)(B, S, D)),
            "wqkv": _w((lambda *s: torch.randn(*s, dtype=torch.bfloat16) * 1.6)(D, 3 * D)),
            "wo": _w((lambda *s: torch.randn(*s, dtype=torch.bfloat16) * 0.1)(D, D)),
        }
    _B_in = _B_setup()

    return {
        "A_x": _A_in["x"],
        "A_wqkv": _A_in["wqkv"],
        "A_wo": _A_in["wo"],
        "B_x": _B_in["x"],
        "B_wqkv": _B_in["wqkv"],
        "B_wo": _B_in["wo"],
    }

def reference(A_x, A_wqkv, A_wo, B_x, B_wqkv, B_wo):
    def _A_ref(x, wqkv, wo):
        B, S, D = x.shape
        H = 32; Dh = D // H; W = 256
        qkv = (lambda x, *d: x.permute(*d))((x @ wqkv).reshape(B, S, 3, H, Dh), 2, 0, 3, 1, 4)
        q, k, v = qkv[0], qkv[1], qkv[2]
        scores = torch.einsum("bhqd,bhkd->bhqk", q, k) * (Dh ** -0.5)
        idx = torch.arange(S)
        mask = (idx[:, None] - idx[None, :] >= 0) & (idx[:, None] - idx[None, :] < W)
        scores = torch.where(mask[None, None], scores, -1e9)
        p = _softmax(scores, axis=-1)
        o = torch.einsum("bhqk,bhkd->bhqd", p, v)
        return (lambda x, *d: x.permute(*d))(o, 0, 2, 1, 3).reshape(B, S, D) @ wo

    def _B_ref(x, wqkv, wo):
        B, S, D = x.shape
        H = 32; Dh = D // H
        qkv = (lambda x, *d: x.permute(*d))((x @ wqkv).reshape(B, S, 3, H, Dh), 2, 0, 3, 1, 4)
        q, k, v = qkv[0], qkv[1], qkv[2]
        phi = lambda t: torch.where(t > 0, t + 1, torch.exp(t)) + 1e-6
        pq, pk = phi(q), phi(k)
        kv = torch.einsum("bhsd,bhse->bhde", pk, v)
        z = torch.einsum("bhsd->bhd", pk)
        num = torch.einsum("bhqd,bhde->bhqe", pq, kv)
        den = torch.einsum("bhqd,bhd->bhq", pq, z)[..., None] + 1e-6
        o = num / den
        return (lambda x, *d: x.permute(*d))(o, 0, 2, 1, 3).reshape(B, S, D) @ wo

    x = A_x
    x = x + _A_ref(_layernorm(x, axis=-1), A_wqkv, A_wo)
    x = x + _B_ref(_layernorm(x, axis=-1), B_wqkv, B_wo)
    x = x + _A_ref(_layernorm(x, axis=-1), A_wqkv, A_wo)
    x = x + _B_ref(_layernorm(x, axis=-1), B_wqkv, B_wo)
    return x
```

```python
import re

REG_RE = re.compile(r'^(-|\|)?(abs\()?([vas])(\d+|\[(\d+):(\d+)\])\)?\|?$')

def parse_reg(tok):
    tok = tok.strip()
    if tok in ('vcc', 'vcc_lo', 'vcc_hi'):
        return {('vcc', 0)}
    if tok in ('exec', 'exec_lo', 'exec_hi'):
        return {('exec', 0)}
    if tok == 'm0':
        return {('m0', 0)}
    m = REG_RE.match(tok)
    if not m:
        return set()
    k = m.group(3)
    if m.group(5) is not None:
        return {(k, i) for i in range(int(m.group(5)), int(m.group(6)) + 1)}
    return {(k, int(m.group(4)))}

TRANS = ('v_exp_f32', 'v_log_f32', 'v_rcp_f32', 'v_rsq_f32', 'v_sqrt_f32', 'v_sin_f32', 'v_cos_f32', 'v_rcp_iflag_f32')

class Ins:
    __slots__ = ('text', 'mn', 'ops', 'rd', 'wr', 'kind', 'passes', 'A', 'B', 'C', 'D', 'states', 'wide_data', 'dpp', 'sreads', 'dl', 'sdwa')

def split_ops(s):
    out, depth, cur = [], 0, ''
    for ch in s:
        if ch in '[(':
            depth += 1
        elif ch in '])':
            depth -= 1
        if ch == ',' and depth == 0:
            out.append(cur.strip()); cur = ''
        else:
            cur += ch
    if cur.strip():
        out.append(cur.strip())
    return out

def analyze(text):
    ins = Ins()
    ins.text = text
    body = text.split(';')[0].strip()
    parts = body.split(None, 1)
    mn = parts[0]
    rest = parts[1] if len(parts) > 1 else ''
    ops = split_ops(rest)
    mods = ''
    if ops:
        last = ops[-1].split(None, 1)
        ops[-1] = last[0]
        mods = last[1] if len(last) > 1 else ''
    ins.mn = mn; ins.ops = ops
    ins.rd = set(); ins.wr = set(); ins.kind = 'other'; ins.passes = 0
    ins.A = ins.B = ins.C = ins.D = set()
    ins.states = 1; ins.wide_data = set(); ins.dpp = False; ins.dl = False; ins.sdwa = False
    R = [parse_reg(o) for o in ops]
    base = mn.replace('_e32', '').replace('_e64', '')
    if mn == 's_nop':
        ins.states = int(ops[0], 0) + 1
        ins.kind = 'nop'
    elif mn.startswith('v_mfma'):
        ins.kind = 'mfma'
        ins.passes = 8 if '32x32' in mn else 4
        ins.D, ins.A, ins.B, ins.C = R[0], R[1], R[2], R[3]
        ins.wr = set(R[0]); ins.rd = R[1] | R[2] | R[3]
    elif mn.startswith('v_'):
        ins.kind = 'trans' if base in TRANS else 'valu'
        if '_dpp' in mn or 'quad_perm' in mods or 'row_' in mods:
            ins.dpp = True
        if '_sdwa' in mn:
            ins.sdwa = True
        if mn.startswith('v_dot'):
            ins.dl = True
        if mn.startswith('v_permlane'):
            ins.kind = 'permlane'
            ins.wr = R[0] | R[1]; ins.rd = R[0] | R[1]
        elif base in ('v_add_co_u32', 'v_sub_co_u32', 'v_addc_co_u32', 'v_subb_co_u32', 'v_subrev_co_u32'):
            ins.wr = R[0] | R[1]
            for r in R[2:]: ins.rd |= r
        elif base in ('v_readfirstlane_b32', 'v_readlane_b32'):
            ins.kind = 'readlane'
            ins.wr = set(R[0])
            for r in R[1:]: ins.rd |= r
        else:
            ins.wr = set(R[0])
            for r in R[1:]: ins.rd |= r
            if base in ('v_fmac_f32', 'v_dot2c_f32_bf16', 'v_pk_fmac_f16') or ins.dpp or ins.sdwa:
                ins.rd |= R[0]
            if base == 'v_cndmask_b32' and len(ops) == 3:
                ins.rd |= {('vcc', 0)}
            if base.startswith('v_cmpx'):
                ins.wr |= {('exec', 0)}
    elif mn.startswith('ds_'):
        ins.kind = 'ds'
        if mn.startswith('ds_read') or mn.startswith('ds_bpermute') or mn.startswith('ds_permute') or mn.startswith('ds_swizzle'):
            ins.wr = set(R[0])
            for r in R[1:]: ins.rd |= r
        else:
            for r in R: ins.rd |= r
    elif mn.startswith('buffer_'):
        ins.kind = 'vmem'
        if mn in ('buffer_wbl2', 'buffer_inv'):
            pass
        elif 'lds' in mods.split():
            for r in R: ins.rd |= r
            ins.rd |= {('m0', 0)}
            ins.kind = 'vmem_lds'
        elif mn.startswith('buffer_load'):
            ins.wr = set(R[0])
            for r in R[1:]: ins.rd |= r
        else:
            for r in R: ins.rd |= r
            if 'x3' in mn or 'x4' in mn:
                ins.wide_data = set(R[0])
            if mn.startswith('buffer_atomic') and 'sc0' in mods.split():
                ins.wr = set(R[0])
    elif mn.startswith('global_'):
        ins.kind = 'vmem'
        if mn.startswith('global_load_lds'):
            for r in R: ins.rd |= r
            ins.rd |= {('m0', 0)}
            ins.kind = 'vmem_lds'
        elif mn.startswith('global_load'):
            ins.wr = set(R[0])
            for r in R[1:]: ins.rd |= r
            if 'd16' in mn: ins.rd |= R[0]
        elif mn.startswith('global_atomic') and 'sc0' in mods.split():
            ins.wr = set(R[0])
            for r in R[1:]: ins.rd |= r
        else:
            for r in R: ins.rd |= r
            if 'x3' in mn or 'x4' in mn:
                ins.wide_data = set(R[1])
    elif mn.startswith('s_'):
        ins.kind = 'salu'
        if mn.startswith('s_cmp') or mn.startswith('s_cbranch') or mn in ('s_branch', 's_waitcnt', 's_barrier', 's_endpgm', 's_sleep', 's_setprio', 's_bitcmp0_b32', 's_bitcmp1_b32', 's_setpc_b64'):
            for r in R: ins.rd |= r
        else:
            if R:
                ins.wr = set(R[0])
                for r in R[1:]: ins.rd |= r
            if 'saveexec' in mn:
                ins.wr |= {('exec', 0)}
    else:
        raise ValueError('unknown instruction: ' + text)
    return ins

def is_valu(i):
    return i.kind in ('valu', 'trans', 'permlane', 'readlane')

def vec(s):
    return {r for r in s if r[0] in ('v', 'a')}

def sreg(s):
    return {r for r in s if r[0] in ('s', 'vcc')}

def required(p, c):
    n = 0
    if p.kind == 'mfma':
        big = 12 if p.passes == 8 else 8
        if c.kind == 'mfma':
            if p.D & (c.A | c.B):
                n = max(n, big)
            if p.D & c.C:
                if not (c.C == p.D and c.passes == p.passes):
                    n = max(n, 10 if p.passes == 8 else 6)
            elif p.D & c.D:
                n = max(n, 10 if p.passes == 8 else 6)
        else:
            if p.D & (vec(c.rd) | vec(c.wr)):
                n = max(n, big)
            if is_valu(c) and (p.C & vec(c.wr)):
                n = max(n, 7 if p.passes == 8 else 3)
            if c.kind in ('ds', 'vmem') and (p.C & vec(c.wr)):
                n = max(n, 7 if p.passes == 8 else 3)
    if is_valu(p):
        pv = vec(p.wr); ps = sreg(p.wr)
        if c.kind == 'mfma' and (pv & c.rd):
            n = max(n, 3 if p.dl else 2)
        if c.kind == 'permlane' and (pv & c.rd):
            n = max(n, 2)
        if is_valu(c) and c.dpp and (pv & c.rd):
            n = max(n, 2)
        if c.kind == 'readlane' and (pv & c.rd):
            n = max(n, 1)
        if p.kind == 'trans' and is_valu(c) and (pv & c.rd):
            n = max(n, 1)
        if p.kind == 'trans' and c.kind in ('ds', 'vmem') and (pv & c.rd):
            n = max(n, 1)
        if p.sdwa and is_valu(c) and (pv & (c.rd | c.wr)):
            n = max(n, 1)
        if p.dl and (pv & (vec(c.rd) | vec(c.wr))):
            same = (c.mn == p.mn)
            if same:
                ab = set()
                for o in c.ops[1:3]: ab |= parse_reg(o)
                if pv & ab: n = max(n, 3)
            else:
                n = max(n, 3)
        if ps:
            if is_valu(c) and (ps & c.rd):
                n = max(n, 4 if c.kind == 'readlane' else 2)
            if c.kind in ('vmem', 'vmem_lds') and (ps & c.rd):
                n = max(n, 5)
            if c.kind == 'salu' and (ps & c.rd):
                n = max(n, 1)
        if ('exec', 0) in p.wr:
            n = max(n, 5 if (is_valu(c) or c.kind == 'mfma') else 0)
    if p.wide_data:
        if (p.wide_data & vec(c.wr)):
            n = max(n, 2)
    if p.kind == 'salu' and ('m0', 0) in p.wr and c.kind == 'vmem_lds':
        n = max(n, 1)
    return n

class Asm:
    def __init__(self):
        self.items = []
    def __call__(self, text):
        for line in text.strip().split('\n'):
            line = line.strip()
            if not line or line.startswith(';'):
                continue
            self.items.append(('i', line))
    def raw(self, text):
        self.items.append(('raw', text))
    def label(self, name):
        self.items.append(('label', name))
    def comment(self, t):
        self.items.append(('raw', '    ; ' + t))
    def flush(self):
        self.items.append(('flush',))
    def reset(self):
        self.items.append(('reset',))
    def render(self):
        out = []
        hist = []
        nops = 0
        def emit_nop(n):
            nonlocal nops
            while n > 0:
                k = min(n, 16)
                t = 's_nop %d' % (k - 1)
                out.append('    ' + t)
                hist.append(analyze(t))
                nops += k
                n -= k
        for it in self.items:
            if it[0] == 'raw':
                out.append(it[1])
            elif it[0] == 'label':
                out.append(it[1] + ':')
            elif it[0] == 'reset':
                hist.clear()
            elif it[0] == 'flush':
                need = 0; dist = 0
                for p in reversed(hist):
                    w = 0
                    if p.kind == 'mfma': w = 12 if p.passes == 8 else 8
                    elif is_valu(p): w = 5 if (sreg(p.wr) or ('exec', 0) in p.wr) else 3
                    elif p.wide_data: w = 2
                    elif p.kind == 'salu' and ('m0', 0) in p.wr: w = 1
                    need = max(need, w - dist)
                    dist += p.states
                    if dist > 16: break
                emit_nop(need)
            else:
                c = analyze(it[1])
                need = 0; dist = 0
                for p in reversed(hist):
                    need = max(need, required(p, c) - dist)
                    dist += p.states
                    if dist > 16: break
                emit_nop(need)
                out.append('    ' + it[1])
                hist.append(c)
                if len(hist) > 40: del hist[:-24]
        self.nops = nops
        return '\n'.join(out) + '\n'

def v(i, n=1):
    return 'v%d' % i if n == 1 else 'v[%d:%d]' % (i, i + n - 1)
def a(i, n=1):
    return 'a%d' % i if n == 1 else 'a[%d:%d]' % (i, i + n - 1)
def s(i, n=1):
    return 's%d' % i if n == 1 else 's[%d:%d]' % (i, i + n - 1)
```

```python
import sys
from asmgen import *

NAME = 'interleave_layers__sliding_block__linear_attn_block__prompt'
WQA, WQB, WOA, WOB = 0x000000, 0x180000, 0x300000, 0x380000
QB, KB, VB, OB = 0x400000, 0x600000, 0x800000, 0xA00000
X1, X2, X3 = 0xC00000, 0xE00000, 0x1000000
KV1 = 0x1200000
KVSZ = 32 * 17 * 16 * 4
KV2 = KV1 + KVSZ
LOG2E = 1.4426950408889634

import struct
def f2u(x): return struct.unpack('<I', struct.pack('<f', x))[0]

A = Asm()
kernels = []
launches = []

def srd(d, b, off, size):
    if off:
        A(f's_add_u32 s{d}, s{b}, {hex(off)}')
        A(f's_addc_u32 s{d+1}, s{b+1}, 0')
    else:
        A(f's_mov_b32 s{d}, s{b}')
        A(f's_mov_b32 s{d+1}, s{b+1}')
    A(f's_mov_b32 s{d+2}, {hex(size)}')
    A(f's_mov_b32 s{d+3}, 0x20000')

def begin(label):
    A.raw('.p2align 8')
    A.raw(f'.globl {label}')
    A.raw(f'.type {label},@function')
    A.label(label)
    A.reset()

def gen_pack():
    L = 'pack_kernel'
    begin(L)
    A('s_cmp_ge_u32 s2, 4096')
    A('s_cbranch_scc1 pack_done')
    A('s_load_dwordx4 s[4:7], s[0:1], 8')
    A('s_load_dwordx4 s[8:11], s[0:1], 32')
    A('s_load_dwordx2 s[12:13], s[0:1], 64')
    A('v_lshlrev_b32 v10, 4, v0')
    A('s_waitcnt lgkmcnt(0)')
    srd(16, 12, 0, 0x400000)
    A('s_cmp_ge_u32 s2, %d' % (2 * KVSZ // 1024))
    A('s_cbranch_scc1 pack_nozero')
    srd(24, 12, KV1, 2 * KVSZ)
    A('v_mov_b32 v4, 0'); A('v_mov_b32 v5, 0'); A('v_mov_b32 v6, 0'); A('v_mov_b32 v7, 0')
    A('s_lshl_b32 s3, s2, 10')
    A('buffer_store_dwordx4 v[4:7], v10, s[24:27], s3 offen')
    A.flush()
    A.label('pack_nozero')
    A('s_cmp_ge_u32 s2, 3072')
    A('s_cbranch_scc1 pack_wo')
    A('s_cmp_ge_u32 s2, 1536')
    A('s_cselect_b32 s20, s8, s4')
    A('s_cselect_b32 s21, s9, s5')
    A('s_cselect_b32 s3, 1536, 0')
    A('s_sub_u32 s3, s2, s3')
    A('s_mov_b32 s22, 0x180000')
    A('s_mov_b32 s23, 0x20000')
    A('s_mul_hi_u32 s28, s3, %d' % ((2**32 + 47) // 48))
    A('s_mul_i32 s29, s28, 48')
    A('s_sub_u32 s29, s3, s29')
    A('s_mul_hi_u32 s30, s29, %d' % ((2**32 + 2) // 3))
    A('s_mul_i32 s31, s30, 3')
    A('s_sub_u32 s31, s29, s31')
    A('s_mul_i32 s30, s30, %d' % (32 * 3072))
    A('s_lshl_b32 s31, s31, 10')
    A('s_lshl_b32 s28, s28, 5')
    A('s_add_u32 s30, s30, s31')
    A('s_add_u32 s30, s30, s28')
    A('v_and_b32 v1, 15, v0')
    A('v_lshrrev_b32 v2, 4, v0')
    A('v_mul_u32_u24 v2, %d, v2' % (8 * 3072))
    A('v_lshl_add_u32 v1, v1, 1, v2')
    A('v_add_u32 v1, s30, v1')
    for j in range(8):
        A(f's_mov_b32 s{32+j}, {j*3072}')
    A('s_branch pack_go')
    A.label('pack_wo')
    A('s_cmp_ge_u32 s2, 3584')
    A('s_cselect_b32 s20, s10, s6')
    A('s_cselect_b32 s21, s11, s7')
    A('s_and_b32 s3, s2, 511')
    A('s_mov_b32 s22, 0x80000')
    A('s_mov_b32 s23, 0x20000')
    A('s_and_b32 s28, s3, 1')
    A('s_lshr_b32 s29, s3, 1')
    A('s_and_b32 s29, s29, 31')
    A('s_lshr_b32 s30, s3, 6')
    A('s_lshl_b32 s29, s29, 14')
    A('s_lshl_b32 s30, s30, 7')
    A('s_lshl_b32 s28, s28, 6')
    A('s_add_u32 s30, s30, s29')
    A('s_add_u32 s30, s30, s28')
    A('v_and_b32 v1, 31, v0')
    A('v_lshrrev_b32 v2, 5, v0')
    A('v_lshlrev_b32 v2, 12, v2')
    A('v_lshl_add_u32 v1, v1, 1, v2')
    A('v_add_u32 v1, s30, v1')
    for j in range(8):
        A(f's_mov_b32 s{32+j}, {(8*(j>>2)+(j&3))*1024}')
    A.label('pack_go')
    for j in range(8):
        A(f'buffer_load_ushort v{12+j}, v1, s[20:23], s{32+j} offen')
    A('s_lshl_b32 s3, s2, 10')
    A('s_waitcnt vmcnt(0)')
    for j in range(4):
        A(f'v_lshl_or_b32 v{4+j}, v{13+2*j}, 16, v{12+2*j}')
    A('buffer_store_dwordx4 v[4:7], v10, s[16:19], s3 offen')
    A.label('pack_done')
    A('s_endpgm')
    kernels.append((L, 24, 24, 48))

def gen_qkv(kind):
    body = f'qkv{kind}_body'
    done = f'qkv{kind}_done'
    srcs = [('1', None, KV1), ('2', X2, KV1)] if kind == 'A' else [('1', X1, KV1), ('2', X3, KV2)]
    for idx, (tag, xoff, kvoff) in enumerate(srcs):
        L = f'qkv{kind}{tag}_kernel'
        begin(L)
        A('s_cmp_ge_u32 s2, 256')
        A(f's_cbranch_scc1 {done}')
        A('s_load_dwordx2 s[6:7], s[0:1], 64')
        if xoff is None:
            A('s_load_dwordx2 s[4:5], s[0:1], 0')
            A('s_waitcnt lgkmcnt(0)')
        else:
            A('s_waitcnt lgkmcnt(0)')
            A(f's_add_u32 s4, s6, {hex(xoff)}')
            A('s_addc_u32 s5, s7, 0')
        A(f's_mov_b32 s8, {hex(kvoff)}')
        if idx == 0:
            A(f's_branch {body}')
        kernels.append((L, 512, 256, 64))
    A.label(body)
    A('s_lshr_b32 s9, s2, 3')
    A('s_and_b32 s10, s2, 7')
    A('v_and_b32 v1, 63, v0')
    A('v_lshrrev_b32 v2, 6, v0')
    A('v_readfirstlane_b32 s11, v2')
    srd(12, 4, 0, 0x200000)
    srd(16, 6, WQA if kind == 'A' else WQB, 0x180000)
    XS = 64
    A('v_lshrrev_b32 v3, 2, v0')
    A('v_lshlrev_b32 v3, 10, v3')
    A('v_and_b32 v4, 3, v0')
    A('v_lshl_add_u32 v3, v4, 4, v3')
    A('s_lshl_b32 s20, s9, 16')
    for i in range(16):
        A(f'buffer_load_dwordx4 {v(XS+4*i,4)}, v3, s[12:15], s20 offen offset:{64*i}')
    A('s_lshl_b32 s21, s10, 2')
    A('s_add_u32 s21, s21, s11')
    A('s_mul_i32 s22, s21, 49152')
    A('v_lshlrev_b32 v5, 4, v1')
    for f in range(48):
        if f % 4 == 0 and f:
            A('s_add_u32 s22, s22, 4096')
        A(f'buffer_load_dwordx4 {a(4*f,4)}, v5, s[16:19], s22 offen offset:{(f%4)*1024}')
    A('v_lshrrev_b32 v6, 2, v1')
    A('v_lshlrev_b32 v7, 1, v4')
    A('v_xor_b32 v6, v6, v7')
    A('v_lshl_add_u32 v6, v4, 4, v6')
    A('v_lshlrev_b32 v6, 4, v6')
    A('v_lshl_add_u32 v6, v2, 14, v6')
    A('v_and_b32 v7, 15, v1')
    A('v_lshrrev_b32 v8, 4, v1')
    A('v_lshlrev_b32 v9, 1, v8')
    A('v_xor_b32 v7, v7, v9')
    A('v_lshl_add_u32 v7, v8, 4, v7')
    A('v_lshlrev_b32 v7, 4, v7')
    A('s_mov_b32 s23, 0x3f803f80')
    for c in range(4):
        A(f'v_mov_b32 v{10+c}, 0'); A(f'v_mov_b32 v{14+c}, 0')
    for i in range(16):
        A(f's_waitcnt vmcnt({48+15-i})')
        for c in range(4):
            r = XS + 4*i + c
            A(f'v_dot2_f32_bf16 v{10+c}, v{r}, s23, v{10+c}')
            A(f'v_dot2_f32_bf16 v{14+c}, v{r}, v{r}, v{14+c}')
    A('v_add_f32 v10, v10, v11'); A('v_add_f32 v12, v12, v13'); A('v_add_f32 v14, v14, v15'); A('v_add_f32 v16, v16, v17')
    A('v_add_f32 v10, v10, v12'); A('v_add_f32 v14, v14, v16')
    A('v_add_f32_dpp v11, v10, v10 quad_perm:[1,0,3,2] row_mask:0xf bank_mask:0xf')
    A('v_add_f32_dpp v15, v14, v14 quad_perm:[1,0,3,2] row_mask:0xf bank_mask:0xf')
    A('v_add_f32_dpp v10, v11, v11 quad_perm:[2,3,0,1] row_mask:0xf bank_mask:0xf')
    A('v_add_f32_dpp v14, v15, v15 quad_perm:[2,3,0,1] row_mask:0xf bank_mask:0xf')
    A(f'v_mul_f32 v10, {hex(f2u(1/512))}, v10')
    A(f'v_mul_f32 v14, {hex(f2u(1/512))}, v14')
    A('v_fma_f32 v14, -v10, v10, v14')
    A('v_max_f32 v14, 0, v14')
    A('v_cvt_pk_bf16_f32 v11, v10, v14')
    A('v_lshlrev_b32 v10, 16, v11')
    A('v_and_b32 v14, 0xffff0000, v11')
    A(f'v_add_f32 v14, {hex(f2u(1e-5))}, v14')
    A('v_cvt_pk_bf16_f32 v14, v14, v14')
    A('v_lshlrev_b32 v14, 16, v14')
    A('v_sqrt_f32 v14, v14')
    A('v_cvt_pk_bf16_f32 v14, v14, v14')
    A('v_lshlrev_b32 v14, 16, v14')
    A('v_rcp_f32 v14, v14')
    A('v_sub_f32 v10, 0, v10')
    A('v_mov_b32 v11, v10')
    A('v_mov_b32 v15, v14')
    T = 20
    for i in range(16):
        for c in range(4):
            r = XS + 4*i + c
            t = T + 2*c
            A(f'v_lshlrev_b32 v{t}, 16, v{r}')
            A(f'v_and_b32 v{t+1}, 0xffff0000, v{r}')
        for c in range(4):
            t = T + 2*c
            A(f'v_pk_add_f32 {v(t,2)}, {v(t,2)}, v[10:11]')
        for c in range(4):
            t = T + 2*c; r = XS + 4*i + c
            A(f'v_cvt_pk_bf16_f32 v{r}, v{t}, v{t+1}')
        for c in range(4):
            r = XS + 4*i + c; t = T + 2*c
            A(f'v_lshlrev_b32 v{t}, 16, v{r}')
            A(f'v_and_b32 v{t+1}, 0xffff0000, v{r}')
        for c in range(4):
            t = T + 2*c
            A(f'v_pk_mul_f32 {v(t,2)}, {v(t,2)}, v[14:15]')
        for c in range(4):
            t = T + 2*c; r = XS + 4*i + c
            A(f'v_cvt_pk_bf16_f32 v{r}, v{t}, v{t+1}')
        A(f'ds_write_b128 v6, {v(XS+4*i,4)} offset:{1024*i}')
    A('s_waitcnt lgkmcnt(0)')
    A('s_barrier')
    ACC = 128
    def acc(sx, mt): return ACC + (sx*4 + mt)*4
    AF = [32, 48]
    orientY = {0: True, 1: kind == 'A', 2: False}
    def rd(ks):
        for mt in range(4):
            A(f'ds_read_b128 {v(AF[ks&1]+4*mt,4)}, v7 offset:{mt*16384+ks*1024}')
    rd(0)
    for ks in range(16):
        if ks < 15:
            rd(ks + 1)
        A(f's_waitcnt vmcnt({45-3*ks}) lgkmcnt({4 if ks < 15 else 0})')
        for mt in range(4):
            for sx in range(3):
                w = a(4*(3*ks+sx), 4); x = v(AF[ks&1]+4*mt, 4)
                d = v(acc(sx, mt), 4)
                c = '0' if ks == 0 else d
                if orientY[sx]:
                    A(f'v_mfma_f32_16x16x32_bf16 {d}, {w}, {x}, {c}')
                else:
                    A(f'v_mfma_f32_16x16x32_bf16 {d}, {x}, {w}, {c}')
    srd(24, 6, QB, 0x600000)
    A('s_lshl_b32 s28, s21, 6')
    A('s_lshl_b32 s29, s9, 1')
    A('s_add_u32 s28, s28, s29')
    A('s_lshl_b32 s28, s28, 10')
    A(f's_add_u32 s29, s28, {hex(KB-QB)}')
    A(f's_add_u32 s30, s28, {hex(VB-QB)}')
    P = 64
    def phi(base, n):
        A(f's_mov_b32 s33, {hex(f2u(LOG2E))}')
        A(f's_mov_b32 s34, {hex(f2u(1e-6))}')
        for i in range(n):
            A(f'v_mul_f32 v{32+i}, s33, v{base+i}')
        for i in range(n):
            A(f'v_exp_f32 v{32+i}, v{32+i} clamp')
        for i in range(n):
            A(f'v_max_f32 v{base+i}, s34, v{base+i}')
        for i in range(n):
            A(f'v_add_f32 v{base+i}, v{base+i}, v{32+i}')
    def packY(sx, dst):
        for u in range(2):
            for m2 in range(2):
                b = acc(sx, 2*u + m2)
                A(f'v_cvt_pk_bf16_f32 v{dst+4*u+2*m2}, v{b}, v{b+1}')
                A(f'v_cvt_pk_bf16_f32 v{dst+4*u+2*m2+1}, v{b+2}, v{b+3}')
        for u in range(2):
            A(f'v_permlane16_swap_b32 v{dst+4*u}, v{dst+4*u+2}')
            A(f'v_permlane16_swap_b32 v{dst+4*u+1}, v{dst+4*u+3}')
    def packX(sx, dst):
        for u in range(2):
            for m2 in range(2):
                b = acc(sx, 2*u + m2)
                A(f'v_cvt_pk_bf16_f32 v{dst+4*u+2*m2}, v{b}, v{b+1}')
                A(f'v_cvt_pk_bf16_f32 v{dst+4*u+2*m2+1}, v{b+2}, v{b+3}')
    if kind == 'A':
        packY(0, P); packY(1, P+8); packX(2, P+16)
        for sx in range(3):
            for u in range(2):
                A(f'buffer_store_dwordx4 {v(P+8*sx+4*u,4)}, v5, s[24:27], s{28+sx} offen offset:{1024*u}')
    else:
        phi(acc(1, 0), 16)
        packX(1, P+8); packX(2, P+16)
        A('v_mov_b32 v28, s23'); A('v_mov_b32 v29, s23'); A('v_mov_b32 v30, s23'); A('v_mov_b32 v31, s23')
        A(f'v_mfma_f32_16x16x32_bf16 v[20:23], {v(P+16,4)}, {v(P+8,4)}, 0')
        A(f'v_mfma_f32_16x16x32_bf16 v[24:27], v[28:31], {v(P+8,4)}, 0')
        A(f'v_mfma_f32_16x16x32_bf16 v[20:23], {v(P+20,4)}, {v(P+12,4)}, v[20:23]')
        A(f'v_mfma_f32_16x16x32_bf16 v[24:27], v[28:31], {v(P+12,4)}, v[24:27]')
        A('s_add_u32 s36, s6, s8'); A('s_addc_u32 s37, s7, 0')
        A(f's_mov_b32 s38, {hex(KVSZ)}'); A('s_mov_b32 s39, 0x20000')
        A('s_mul_i32 s35, s21, 1088')
        A('v_and_b32 v9, 15, v1')
        A('v_lshlrev_b32 v9, 2, v9')
        A('v_lshl_add_u32 v9, v8, 8, v9')
        for r in range(4):
            A(f'buffer_atomic_add_f32 v{20+r}, v9, s[36:39], s35 offen offset:{64*r}')
        A('s_mov_b64 exec, 0xffff')
        A('buffer_atomic_add_f32 v24, v9, s[36:39], s35 offen offset:1024')
        A('s_mov_b64 exec, -1')
        phi(acc(0, 0), 16)
        packY(0, P)
        for u in range(2):
            A(f'buffer_store_dwordx4 {v(P+4*u,4)}, v5, s[24:27], s28 offen offset:{1024*u}')
    A.label(done)
    A('s_endpgm')

def gen_att():
    L = 'att_kernel'
    begin(L)
    A('s_cmp_ge_u32 s2, 256')
    A('s_cbranch_scc1 att_done')
    A('s_load_dwordx2 s[6:7], s[0:1], 64')
    A('s_and_b32 s9, s2, 31')
    A('s_lshr_b32 s10, s2, 5')
    A('v_and_b32 v1, 63, v0')
    A('v_lshrrev_b32 v2, 6, v0')
    A('v_readfirstlane_b32 s11, v2')
    A('v_lshlrev_b32 v3, 4, v1')
    A('s_waitcnt lgkmcnt(0)')
    srd(12, 6, QB, 0x600000)
    A('s_lshl_b32 s16, s10, 3')
    A('s_lshl_b32 s17, s11, 1')
    A('s_add_u32 s18, s16, s17')
    A('s_sub_i32 s18, s18, 8')
    A('s_max_i32 s18, s18, 0')
    A('s_lshl_b32 s19, s9, 6')
    A('s_add_u32 s18, s18, s19')
    A('s_lshl_b32 s18, s18, 10')
    A(f's_add_u32 s20, s18, {hex(KB-QB)}')
    A(f's_add_u32 s21, s18, {hex(VB-QB)}')
    A('s_lshl_b32 s22, s11, 11')
    A('s_mov_b32 m0, s22')
    A('buffer_load_dwordx4 v3, s[12:15], s20 offen lds')
    A('buffer_load_dwordx4 v3, s[12:15], s20 offen offset:1024 lds')
    A('s_add_u32 s22, s22, 16384')
    A('s_mov_b32 m0, s22')
    A('buffer_load_dwordx4 v3, s[12:15], s21 offen lds')
    A('buffer_load_dwordx4 v3, s[12:15], s21 offen offset:1024 lds')
    A('s_add_u32 s23, s16, s11')
    A('s_add_u32 s24, s23, s19')
    A('s_lshl_b32 s24, s24, 10')
    Qr = 4
    A(f'buffer_load_dwordx4 {v(Qr,4)}, v3, s[12:15], s24 offen')
    A('s_mov_b32 s25, 0x3f803f80')
    for j in range(4): A(f'v_mov_b32 v{8+j}, s25')
    A('v_mov_b32 v12, 0x8000')
    A('ds_write_b128 v12, v[8:11]')
    A('v_and_b32 v13, 3, v1')
    A('v_bfe_u32 v14, v1, 2, 2')
    A('v_bfe_u32 v15, v1, 4, 1')
    A('v_lshl_add_u32 v13, v15, 2, v13')
    A('v_lshl_add_u32 v13, v14, 3, v13')
    A('v_and_b32 v14, 32, v1')
    A('v_add_u32 v13, v13, v14')
    A('v_lshlrev_b32 v13, 4, v13')
    A('v_lshl_add_u32 v13, v2, 10, v13')
    A('v_and_b32 v14, 15, v1')
    A('v_lshrrev_b32 v15, 5, v1')
    A('v_lshl_add_u32 v14, v15, 5, v14')
    A('v_lshlrev_b32 v14, 4, v14')
    A('v_lshl_add_u32 v14, v2, 10, v14')
    A('v_add_u32 v14, 16384, v14')
    A('v_and_b32 v16, 16, v1')
    A('v_cmp_eq_u32 s[26:27], 0, v16')
    A('v_mov_b32 v16, 0')
    A('v_mov_b32 v17, 0x100')
    A('v_cndmask_b32 v16, v16, v17, s[26:27]')
    A('v_cndmask_b32 v14, v12, v14, s[26:27]')
    A('v_mul_u32_u24 v17, 3, v16')
    A('v_and_b32 v18, 31, v1')
    A('v_lshlrev_b32 v19, 3, v15')
    A('v_sub_u32 v18, v18, v19')
    MS = 32
    for r in range(16):
        m, aa, b = r >> 3, (r >> 2) & 1, r & 3
        A(f'v_cmp_le_i32 {s(MS+2*r,2)}, {16*aa+4*m+b}, v18')
    MB = 20
    A('v_mov_b32 v28, 0xffff'); A('v_mov_b32 v29, 0xffff0000')
    for jj in range(8):
        A(f'v_cndmask_b32 v{MB+jj}, 0, v28, {s(MS+4*jj,2)}')
        A(f'v_cndmask_b32 v30, 0, v29, {s(MS+4*jj+2,2)}')
        A(f'v_or_b32 v{MB+jj}, v{MB+jj}, v30')
    A('s_waitcnt vmcnt(0) lgkmcnt(0)')
    A('s_barrier')
    KF = 32
    S0 = 96
    for i in range(9):
        A(f'ds_read_b128 {v(KF+4*i,4)}, v13 offset:{1024*i}')
    for i in range(9):
        A(f's_waitcnt lgkmcnt({8-i})')
        A(f'v_mfma_f32_32x32x16_bf16 {v(S0+16*i,16)}, {v(KF+4*i,4)}, {v(Qr,4)}, 0')
    VF = 32
    A('s_cmp_lg_u32 s10, 0')
    A.flush()
    A('s_cbranch_scc1 att_valid')
    A(f's_mov_b32 s28, {hex(f2u(-1e30))}')
    for i in range(8):
        A(f's_cmp_ge_u32 s11, {8-i}')
        A('s_cbranch_scc1 att_valid')
        for r in range(16):
            A(f'v_mov_b32 v{S0+16*i+r}, s28')
    A.label('att_valid')
    order = [1, 2, 3, 4, 5, 6, 7, 0, 8]
    def vread(i, m, dst):
        A(f'v_mad_u32_u24 v31, v16, {4*i+m}, v14')
        A(f'ds_read_b128 {v(dst,4)}, v31')
    slot = {}
    n = 0
    for i in order[:8]:
        for m in range(2):
            slot[(i, m)] = VF + 4*n; vread(i, m, VF + 4*n); n += 1
    for r in range(16):
        A(f'v_cndmask_b32 v{S0+r}, v{S0+r}, v{S0+128+r}, {s(MS+2*r,2)}')
    for m in range(2):
        slot[(8, m)] = S0 + 128 + 4*m; vread(8, m, S0 + 128 + 4*m)
    MX = 240
    for c in range(4):
        b = S0 + 32*c
        A(f'v_max3_f32 v{MX+c}, v{b}, v{b+1}, v{b+2}')
        k = 3
        while k + 1 < 32:
            A(f'v_max3_f32 v{MX+c}, v{MX+c}, v{b+k}, v{b+k+1}')
            k += 2
        A(f'v_max_f32 v{MX+c}, v{MX+c}, v{b+31}')
    A(f'v_max3_f32 v{MX}, v{MX}, v{MX+1}, v{MX+2}')
    A(f'v_max_f32 v{MX}, v{MX}, v{MX+3}')
    A(f'v_mov_b32 v{MX+1}, v{MX}')
    A(f'v_permlane32_swap_b32 v{MX}, v{MX+1}')
    A(f'v_max_f32 v{MX}, v{MX}, v{MX+1}')
    C = 0.25 * LOG2E
    A(f's_mov_b32 s29, {hex(f2u(C))}')
    A(f'v_mul_f32 v{MX}, {hex(f2u(-C))}, v{MX}')
    ACC = 240 + 0
    A(f'v_mov_b32 v30, v{MX}')
    ACC = 240
    first = True
    for i in order[:8]:
        b = S0 + 16*i
        for r in range(16):
            A(f'v_fma_f32 v{b+r}, v{b+r}, s29, v30')
        for r in range(16):
            A(f'v_exp_f32 v{b+r}, v{b+r}')
        for jj in range(8):
            A(f'v_cvt_pk_bf16_f32 v{b+jj}, v{b+2*jj}, v{b+2*jj+1}')
        if first:
            A('s_waitcnt lgkmcnt(0)')
        if i == 0:
            for jj in range(8):
                A(f'v_and_b32 v{b+8+jj}, v{b+jj}, v{MB+jj}')
            for jj in range(8):
                A(f'v_bfi_b32 v{b+jj}, v{MB+jj}, 0, v{b+jj}')
            for m in range(2):
                A(f'v_mfma_f32_32x32x16_bf16 {v(ACC,16)}, {v(slot[(8,m)],4)}, {v(b+8+4*m,4)}, {v(ACC,16)}')
        for m in range(2):
            c = '0' if first else v(ACC, 16)
            A(f'v_mfma_f32_32x32x16_bf16 {v(ACC,16)}, {v(slot[(i,m)],4)}, {v(b+4*m,4)}, {c}')
            first = False
    A(f'v_rcp_f32 v31, v{ACC+8}')
    for r in range(8):
        A(f'v_mul_f32 v{ACC+r}, v{ACC+r}, v31')
    for jj in range(4):
        A(f'v_cvt_pk_bf16_f32 v{8+jj}, v{ACC+2*jj}, v{ACC+2*jj+1}')
    srd(12, 6, OB, 0x200000)
    A('s_lshl_b32 s24, s23, 5')
    A('s_add_u32 s24, s24, s9')
    A('s_lshl_b32 s24, s24, 10')
    A('buffer_store_dwordx4 v[8:11], v3, s[12:15], s24 offen')
    A.label('att_done')
    A('s_endpgm')
    kernels.append((L, 256, 256, 72))

def gen_out(kind):
    body = f'out{kind}_body'; done = f'out{kind}_done'
    cfg = [('1', None, X1, 0), ('2', X2, X3, 0)] if kind == 'A' else [('1', X1, X2, KV1), ('2', X3, None, KV2)]
    for idx, (tag, xin, xout, kvoff) in enumerate(cfg):
        L = f'out{kind}{tag}_kernel'
        begin(L)
        A('s_cmp_ge_u32 s2, 256')
        A(f's_cbranch_scc1 {done}')
        A('s_load_dwordx2 s[6:7], s[0:1], 64')
        if xin is None: A('s_load_dwordx2 s[4:5], s[0:1], 0')
        if xout is None: A('s_load_dwordx2 s[40:41], s[0:1], 48')
        A('s_waitcnt lgkmcnt(0)')
        if xin is not None:
            A(f's_add_u32 s4, s6, {hex(xin)}'); A('s_addc_u32 s5, s7, 0')
        if xout is not None:
            A(f's_add_u32 s40, s6, {hex(xout)}'); A('s_addc_u32 s41, s7, 0')
        A(f's_mov_b32 s8, {hex(kvoff)}')
        if idx == 0:
            A(f's_branch {body}')
        kernels.append((L, 256, 256, 64))
    A.label(body)
    A('s_lshr_b32 s9, s2, 3')
    A('s_and_b32 s10, s2, 7')
    A('v_and_b32 v1, 63, v0')
    A('v_lshrrev_b32 v2, 6, v0')
    A('v_readfirstlane_b32 s11, v2')
    A('v_lshlrev_b32 v3, 4, v1')
    srd(12, 6, OB if kind == 'A' else QB, 0x200000)
    srd(16, 6, WOA if kind == 'A' else WOB, 0x80000)
    OF = 16
    WF = 80
    ACC = 144
    KVF = 208
    nld = 0
    if kind == 'B':
        A('s_add_u32 s36, s6, s8'); A('s_addc_u32 s37, s7, 0')
        A(f's_mov_b32 s38, {hex(KVSZ)}'); A('s_mov_b32 s39, 0x20000')
        A('v_and_b32 v4, 31, v1')
        A('v_min_u32 v4, 16, v4')
        A('v_lshlrev_b32 v4, 6, v4')
        A('v_lshrrev_b32 v5, 5, v1')
        A('v_lshl_add_u32 v4, v5, 5, v4')
        A('s_mul_i32 s35, s11, %d' % (8 * 1088))
        for hh in range(8):
            if hh == 3 or hh == 6:
                A('s_add_u32 s35, s35, %d' % (3 * 1088))
            o = (hh % 3) * 1088
            A(f'buffer_load_dwordx4 {v(ACC+8*hh,4)}, v4, s[36:39], s35 offen offset:{o}')
            A(f'buffer_load_dwordx4 {v(ACC+8*hh+4,4)}, v4, s[36:39], s35 offen offset:{o+16}')
        A('s_lshl_b32 s20, s11, 9')
        A('s_lshl_b32 s21, s9, 1')
        A('s_add_u32 s20, s20, s21')
        A('s_lshl_b32 s20, s20, 10')
        for hh in range(8):
            for u in range(2):
                A(f'buffer_load_dwordx4 {v(OF+(u*8+hh)*4,4)}, v3, s[12:15], s20 offen offset:{1024*u}')
            A('s_add_u32 s20, s20, 65536')
    else:
        A('s_lshl_b32 s20, s9, 6')
        A('s_lshl_b32 s21, s11, 3')
        A('s_add_u32 s20, s20, s21')
        A('s_lshl_b32 s20, s20, 10')
        A('s_add_u32 s21, s20, 32768')
        for hh in range(8):
            if hh == 4:
                A('s_add_u32 s20, s20, 4096'); A('s_add_u32 s21, s21, 4096')
            for u in range(2):
                A(f'buffer_load_dwordx4 {v(OF+(u*8+hh)*4,4)}, v3, s[12:15], s{20+u} offen offset:{1024*(hh%4)}')
    A('s_lshl_b32 s22, s10, 5')
    A('s_lshl_b32 s23, s11, 3')
    A('s_add_u32 s22, s22, s23')
    A('s_lshl_b32 s22, s22, 11')
    for f in range(16):
        if f % 4 == 0 and f:
            A('s_add_u32 s22, s22, 4096')
        A(f'buffer_load_dwordx4 {v(WF+4*f,4)}, v3, s[16:19], s22 offen offset:{1024*(f%4)}')
    srd(24, 4, 0, 0x200000)
    srd(28, 40, 0, 0x200000)
    A('v_and_b32 v6, 31, v1')
    A('v_lshlrev_b32 v6, 10, v6')
    A('v_lshrrev_b32 v7, 5, v1')
    A('v_lshl_add_u32 v6, v7, 3, v6')
    A('s_lshr_b32 s32, s11, 1')
    A('s_and_b32 s33, s11, 1')
    A('s_lshl_b32 s34, s9, 16')
    A('s_lshl_b32 s32, s32, 15')
    A('s_add_u32 s34, s34, s32')
    A('s_lshl_b32 s32, s10, 7')
    A('s_add_u32 s34, s34, s32')
    A('s_lshl_b32 s33, s33, 6')
    A('s_add_u32 s34, s34, s33')
    RES = 208
    for aa in range(4):
        A(f'buffer_load_dwordx2 {v(RES+2*aa,2)}, v6, s[24:27], s34 offen offset:{16*aa}')
    if kind == 'B':
        KVP = 216
        A('s_waitcnt vmcnt(36)')
        for hh in range(8):
            for jj in range(4):
                A(f'v_cvt_pk_bf16_f32 v{KVP+4*hh+jj}, v{ACC+8*hh+2*jj}, v{ACC+8*hh+2*jj+1}')
        A(f's_mov_b32 s42, {hex(f2u(1e-6))}')
        k = 0
        jobs = [(hh, u) for hh in range(8) for u in range(2)]
        def fin(idx):
            hh, u = jobs[idx]; b = ACC + 16*(idx % 4); o = OF + (u*8+hh)*4
            A(f'v_add_f32 v8, s42, v{b+8}')
            A('v_rcp_f32 v8, v8')
            for r in range(8):
                A(f'v_mul_f32 v{b+r}, v{b+r}, v8')
            for jj in range(4):
                A(f'v_cvt_pk_bf16_f32 v{o+jj}, v{b+2*jj}, v{b+2*jj+1}')
        for idx, (hh, u) in enumerate(jobs):
            A(f's_waitcnt vmcnt({35-idx})')
            b = ACC + 16*(idx % 4)
            A(f'v_mfma_f32_32x32x16_bf16 {v(b,16)}, {v(KVP+4*hh,4)}, {v(OF+(u*8+hh)*4,4)}, 0')
            if idx >= 2:
                fin(idx - 2)
        fin(14); fin(15)
    for hh in range(8):
        A(f's_waitcnt vmcnt({4+14-2*hh})')
        for u in range(2):
            for nt in range(2):
                d = v(ACC + (u*2+nt)*16, 16)
                c = '0' if hh == 0 else d
                A(f'v_mfma_f32_32x32x16_bf16 {d}, {v(WF+(hh*2+nt)*4,4)}, {v(OF+(u*8+hh)*4,4)}, {c}')
    A('v_lshl_add_u32 v8, v2, 12, v3')
    A('v_lshl_add_u32 v9, v2, 14, v3')
    for q in range(4):
        for i in range(4):
            A(f'ds_write_b128 v8, {v(ACC+16*q+4*i,4)} offset:{q*16384+i*1024}')
    A('s_waitcnt lgkmcnt(0)')
    A('s_barrier')
    for sw in range(4):
        for i in range(4):
            A(f'ds_read_b128 {v(16+16*sw+4*i,4)}, v9 offset:{sw*4096+i*1024}')
    A('s_waitcnt lgkmcnt(8)')
    for r in range(16): A(f'v_add_f32 v{16+r}, v{16+r}, v{32+r}')
    A('s_waitcnt lgkmcnt(0)')
    for r in range(16): A(f'v_add_f32 v{48+r}, v{48+r}, v{64+r}')
    for r in range(16): A(f'v_add_f32 v{16+r}, v{16+r}, v{48+r}')
    for jj in range(8): A(f'v_cvt_pk_bf16_f32 v{32+jj}, v{16+2*jj}, v{17+2*jj}')
    A('s_waitcnt vmcnt(0)')
    for jj in range(8):
        A(f'v_lshlrev_b32 v{16+2*jj}, 16, v{32+jj}')
        A(f'v_and_b32 v{17+2*jj}, 0xffff0000, v{32+jj}')
        A(f'v_lshlrev_b32 v{48+2*jj}, 16, v{RES+jj}')
        A(f'v_and_b32 v{49+2*jj}, 0xffff0000, v{RES+jj}')
    for r in range(16): A(f'v_add_f32 v{16+r}, v{16+r}, v{48+r}')
    for jj in range(8): A(f'v_cvt_pk_bf16_f32 v{32+jj}, v{16+2*jj}, v{17+2*jj}')
    for aa in range(4):
        A(f'buffer_store_dwordx2 {v(32+2*aa,2)}, v6, s[28:31], s34 offen offset:{16*aa}')
    A.label(done)
    A('s_endpgm')

gen_pack(); gen_qkv('A'); gen_att(); gen_out('A'); gen_qkv('B'); gen_out('B')

launches = [
    ('pack_kernel', 4096, 64, 0),
    ('qkvA1_kernel', 256, 256, 65536), ('att_kernel', 256, 512, 32768 + 64), ('outA1_kernel', 256, 256, 65536),
    ('qkvB1_kernel', 256, 256, 65536), ('outB1_kernel', 256, 256, 65536),
    ('qkvA2_kernel', 256, 256, 65536), ('att_kernel', 256, 512, 32768 + 64), ('outA2_kernel', 256, 256, 65536),
    ('qkvB2_kernel', 256, 256, 65536), ('outB2_kernel', 256, 256, 65536),
]
extra = int(sys.argv[2]) if len(sys.argv) > 2 else 0
head = '; generated by work/gen1.py\n'
for k, g, b, l in launches:
    head += f'; @launch kernel={k} grid=({g},1,1) block=({b},1,1) lds={l}\n'
for i in range(extra):
    head += f'; @launch kernel=nop_kernel grid=(256,1,1) block=(256,1,1) lds=0\n'
if extra:
    begin('nop_kernel'); A('s_endpgm'); kernels.append(('nop_kernel', 8, 8, 16))
txt = head + '.amdgcn_target "amdgcn-amd-amdhsa--gfx950"\n.text\n' + A.render()
txt += '.section .rodata,"a"\n'
for L, nv, acc, ns in kernels:
    txt += f'''.p2align 6
.amdhsa_kernel {L}
  .amdhsa_next_free_vgpr {nv}
  .amdhsa_next_free_sgpr {ns}
  .amdhsa_accum_offset {acc}
  .amdhsa_group_segment_fixed_size 0
  .amdhsa_kernarg_size 72
  .amdhsa_user_sgpr_count 2
  .amdhsa_user_sgpr_kernarg_segment_ptr 1
  .amdhsa_system_sgpr_workgroup_id_x 1
  .amdhsa_float_denorm_mode_32 3
.end_amdhsa_kernel
'''
out = sys.argv[1] if len(sys.argv) > 1 else f'cdna_kernels/{NAME}.s'
open(out, 'w').write(txt)
print('wrote', out, 'nops', A.nops, 'lines', txt.count('\n'))
```

```python
import sys
from asmgen import *

NAME = 'interleave_layers__sliding_block__linear_attn_block__prompt'
WQA, WQB, WOA, WOB = 0x000000, 0x180000, 0x300000, 0x380000
QB, KB, VB, OB = 0x400000, 0x600000, 0x800000, 0xA00000
X1, X2, X3 = 0xC00000, 0xE00000, 0x1000000
KV1 = 0x1200000
KVSZ = 32 * 17 * 16 * 4
KV2 = KV1 + KVSZ
LOG2E = 1.4426950408889634

import struct
def f2u(x): return struct.unpack('<I', struct.pack('<f', x))[0]

A = Asm()
kernels = []
launches = []

def srd(d, b, off, size):
    if off:
        A(f's_add_u32 s{d}, s{b}, {hex(off)}')
        A(f's_addc_u32 s{d+1}, s{b+1}, 0')
    else:
        A(f's_mov_b32 s{d}, s{b}')
        A(f's_mov_b32 s{d+1}, s{b+1}')
    A(f's_mov_b32 s{d+2}, {hex(size)}')
    A(f's_mov_b32 s{d+3}, 0x20000')

import os
STAMP = int(os.environ.get('STAMP', '0'))
DBGOFF = 0x1300000
nst = [0]
def stamp():
    if not STAMP: return
    i = nst[0]; nst[0] += 1
    assert i < 14
    A(f's_memtime s[{72+2*i}:{73+2*i}]')
def stamp_begin():
    nst[0] = 0
    if not STAMP: return
    A('s_memrealtime s[70:71]')
    stamp()
def stamp_end(kidx, wsreg=6):
    if not STAMP: return
    stamp()
    A('s_memrealtime s[100:101]')
    A('s_mov_b64 exec, -1')
    A('s_load_dword s69, s[0:1], 56')
    A(f's_add_u32 s64, s{wsreg}, {hex(DBGOFF)}'); A(f's_addc_u32 s65, s{wsreg+1}, 0')
    A('s_mov_b32 s66, 0x800000'); A('s_mov_b32 s67, 0x20000')
    A('v_lshrrev_b32 v1, 6, v0')
    A('s_lshl_b32 s68, s2, 3')
    A('v_add_u32 v1, s68, v1')
    A('v_lshlrev_b32 v1, 7, v1')
    A('s_waitcnt lgkmcnt(0)')
    A('s_lshr_b32 s69, s69, 9'); A('s_and_b32 s69, s69, 31'); A('s_lshl_b32 s69, s69, 18')
    A('v_add_u32 v1, s69, v1')
    A('s_mov_b64 exec, 1')
    A('v_mov_b32 v2, s70'); A('buffer_store_dword v2, v1, s[64:67], 0 offen offset:0')
    A('v_mov_b32 v3, s100'); A('buffer_store_dword v3, v1, s[64:67], 0 offen offset:4')
    for i in range(nst[0]):
        A(f'v_mov_b32 v{4+i}, s{72+2*i}')
        A(f'buffer_store_dword v{4+i}, v1, s[64:67], 0 offen offset:{8+4*i}')

def begin(label):
    A.raw('.p2align 8')
    A.raw(f'.globl {label}')
    A.raw(f'.type {label},@function')
    A.label(label)
    A.reset()

def gen_pack():
    L = 'pack_kernel'
    begin(L)
    A('s_cmp_ge_u32 s2, 4096')
    A('s_cbranch_scc1 pack_done')
    A('s_load_dwordx4 s[4:7], s[0:1], 8')
    A('s_load_dwordx4 s[8:11], s[0:1], 32')
    A('s_load_dwordx2 s[12:13], s[0:1], 64')
    A('v_lshlrev_b32 v10, 4, v0')
    A('s_waitcnt lgkmcnt(0)')
    srd(16, 12, 0, 0x400000)
    A('s_cmp_ge_u32 s2, %d' % (2 * KVSZ // 1024))
    A('s_cbranch_scc1 pack_nozero')
    srd(24, 12, KV1, 2 * KVSZ)
    A('v_mov_b32 v4, 0'); A('v_mov_b32 v5, 0'); A('v_mov_b32 v6, 0'); A('v_mov_b32 v7, 0')
    A('s_lshl_b32 s3, s2, 10')
    A('buffer_store_dwordx4 v[4:7], v10, s[24:27], s3 offen')
    A.flush()
    A.label('pack_nozero')
    A('s_cmp_ge_u32 s2, 3072')
    A('s_cbranch_scc1 pack_wo')
    A('s_cmp_ge_u32 s2, 1536')
    A('s_cselect_b32 s20, s8, s4')
    A('s_cselect_b32 s21, s9, s5')
    A('s_cselect_b32 s3, 1536, 0')
    A('s_sub_u32 s3, s2, s3')
    A('s_mov_b32 s22, 0x180000')
    A('s_mov_b32 s23, 0x20000')
    A('s_mul_hi_u32 s28, s3, %d' % ((2**32 + 47) // 48))
    A('s_mul_i32 s29, s28, 48')
    A('s_sub_u32 s29, s3, s29')
    A('s_mul_hi_u32 s30, s29, %d' % ((2**32 + 2) // 3))
    A('s_mul_i32 s31, s30, 3')
    A('s_sub_u32 s31, s29, s31')
    A('s_mul_i32 s30, s30, %d' % (32 * 3072))
    A('s_lshl_b32 s31, s31, 10')
    A('s_lshl_b32 s28, s28, 5')
    A('s_add_u32 s30, s30, s31')
    A('s_add_u32 s30, s30, s28')
    A('v_and_b32 v1, 15, v0')
    A('v_lshrrev_b32 v2, 4, v0')
    A('v_mul_u32_u24 v2, %d, v2' % (8 * 3072))
    A('v_lshl_add_u32 v1, v1, 1, v2')
    A('v_add_u32 v1, s30, v1')
    for j in range(8):
        A(f's_mov_b32 s{32+j}, {j*3072}')
    A('s_branch pack_go')
    A.label('pack_wo')
    A('s_cmp_ge_u32 s2, 3584')
    A('s_cselect_b32 s20, s10, s6')
    A('s_cselect_b32 s21, s11, s7')
    A('s_and_b32 s3, s2, 511')
    A('s_mov_b32 s22, 0x80000')
    A('s_mov_b32 s23, 0x20000')
    A('s_and_b32 s28, s3, 1')
    A('s_lshr_b32 s29, s3, 1')
    A('s_and_b32 s29, s29, 31')
    A('s_lshr_b32 s30, s3, 6')
    A('s_lshl_b32 s29, s29, 14')
    A('s_lshl_b32 s30, s30, 7')
    A('s_lshl_b32 s28, s28, 6')
    A('s_add_u32 s30, s30, s29')
    A('s_add_u32 s30, s30, s28')
    A('v_and_b32 v1, 31, v0')
    A('v_lshrrev_b32 v2, 5, v0')
    A('v_lshlrev_b32 v2, 12, v2')
    A('v_lshl_add_u32 v1, v1, 1, v2')
    A('v_add_u32 v1, s30, v1')
    for j in range(8):
        A(f's_mov_b32 s{32+j}, {(8*(j>>2)+(j&3))*1024}')
    A.label('pack_go')
    for j in range(8):
        A(f'buffer_load_ushort v{12+j}, v1, s[20:23], s{32+j} offen')
    A('s_lshl_b32 s3, s2, 10')
    A('s_waitcnt vmcnt(0)')
    for j in range(4):
        A(f'v_lshl_or_b32 v{4+j}, v{13+2*j}, 16, v{12+2*j}')
    A('buffer_store_dwordx4 v[4:7], v10, s[16:19], s3 offen')
    A.label('pack_done')
    A('s_endpgm')
    kernels.append((L, 24, 24, 48))

def gen_qkv(kind):
    body = f'qkv{kind}_body'
    done = f'qkv{kind}_done'
    srcs = [('1', None, KV1), ('2', X2, KV1)] if kind == 'A' else [('1', X1, KV1), ('2', X3, KV2)]
    for idx, (tag, xoff, kvoff) in enumerate(srcs):
        L = f'qkv{kind}{tag}_kernel'
        begin(L)
        A('s_cmp_ge_u32 s2, 256')
        A(f's_cbranch_scc1 {done}')
        A('s_load_dwordx2 s[6:7], s[0:1], 64')
        if xoff is None:
            A('s_load_dwordx2 s[4:5], s[0:1], 0')
            A('s_waitcnt lgkmcnt(0)')
        else:
            A('s_waitcnt lgkmcnt(0)')
            A(f's_add_u32 s4, s6, {hex(xoff)}')
            A('s_addc_u32 s5, s7, 0')
        A(f's_mov_b32 s8, {hex(kvoff)}')
        if idx == 0:
            A(f's_branch {body}')
        kernels.append((L, 512, 256, 64))
    A.label(body)
    stamp_begin()
    A('s_lshr_b32 s9, s2, 3')
    A('s_and_b32 s10, s2, 7')
    A('v_and_b32 v1, 63, v0')
    A('v_lshrrev_b32 v2, 6, v0')
    A('v_readfirstlane_b32 s11, v2')
    srd(12, 4, 0, 0x200000)
    srd(16, 6, WQA if kind == 'A' else WQB, 0x180000)
    XS = 64
    A('v_lshrrev_b32 v3, 2, v0')
    A('v_lshlrev_b32 v3, 10, v3')
    A('v_and_b32 v4, 3, v0')
    A('v_lshl_add_u32 v3, v4, 4, v3')
    A('s_lshl_b32 s20, s9, 16')
    for i in range(16):
        A(f'buffer_load_dwordx4 {v(XS+4*i,4)}, v3, s[12:15], s20 offen offset:{64*i}')
    A('s_lshl_b32 s21, s10, 2')
    A('s_add_u32 s21, s21, s11')
    A('s_mul_i32 s22, s21, 49152')
    A('v_lshlrev_b32 v5, 4, v1')
    for f in range(48):
        if f % 4 == 0 and f:
            A('s_add_u32 s22, s22, 4096')
        A(f'buffer_load_dwordx4 {a(4*f,4)}, v5, s[16:19], s22 offen offset:{(f%4)*1024}')
    A('v_lshrrev_b32 v6, 2, v1')
    A('v_lshlrev_b32 v7, 1, v4')
    A('v_xor_b32 v6, v6, v7')
    A('v_lshl_add_u32 v6, v4, 4, v6')
    A('v_lshlrev_b32 v6, 4, v6')
    A('v_lshl_add_u32 v6, v2, 14, v6')
    A('v_and_b32 v7, 15, v1')
    A('v_lshrrev_b32 v8, 4, v1')
    A('v_lshlrev_b32 v9, 1, v8')
    A('v_xor_b32 v7, v7, v9')
    A('v_lshl_add_u32 v7, v8, 4, v7')
    A('v_lshlrev_b32 v7, 4, v7')
    A('s_mov_b32 s23, 0x3f803f80')
    stamp()
    for c in range(4):
        A(f'v_mov_b32 v{10+c}, 0'); A(f'v_mov_b32 v{14+c}, 0')
    for i in range(16):
        A(f's_waitcnt vmcnt({48+15-i})')
        for c in range(4):
            r = XS + 4*i + c
            A(f'v_dot2_f32_bf16 v{10+c}, v{r}, s23, v{10+c}')
            A(f'v_dot2_f32_bf16 v{14+c}, v{r}, v{r}, v{14+c}')
    stamp()
    A('v_add_f32 v10, v10, v11'); A('v_add_f32 v12, v12, v13'); A('v_add_f32 v14, v14, v15'); A('v_add_f32 v16, v16, v17')
    A('v_add_f32 v10, v10, v12'); A('v_add_f32 v14, v14, v16')
    A('v_add_f32_dpp v11, v10, v10 quad_perm:[1,0,3,2] row_mask:0xf bank_mask:0xf')
    A('v_add_f32_dpp v15, v14, v14 quad_perm:[1,0,3,2] row_mask:0xf bank_mask:0xf')
    A('v_add_f32_dpp v10, v11, v11 quad_perm:[2,3,0,1] row_mask:0xf bank_mask:0xf')
    A('v_add_f32_dpp v14, v15, v15 quad_perm:[2,3,0,1] row_mask:0xf bank_mask:0xf')
    A(f'v_mul_f32 v10, {hex(f2u(1/512))}, v10')
    A(f'v_mul_f32 v14, {hex(f2u(1/512))}, v14')
    A('v_fma_f32 v14, -v10, v10, v14')
    A('v_max_f32 v14, 0, v14')
    A('v_cvt_pk_bf16_f32 v11, v10, v14')
    A('v_lshlrev_b32 v10, 16, v11')
    A('v_and_b32 v14, 0xffff0000, v11')
    A(f'v_add_f32 v14, {hex(f2u(1e-5))}, v14')
    A('v_cvt_pk_bf16_f32 v14, v14, v14')
    A('v_lshlrev_b32 v14, 16, v14')
    A('v_sqrt_f32 v14, v14')
    A('v_cvt_pk_bf16_f32 v14, v14, v14')
    A('v_lshlrev_b32 v14, 16, v14')
    A('v_rcp_f32 v14, v14')
    A('v_sub_f32 v10, 0, v10')
    A('v_mov_b32 v11, v10')
    A('v_mov_b32 v15, v14')
    T = 20
    for i in range(16):
        for c in range(4):
            r = XS + 4*i + c
            t = T + 2*c
            A(f'v_lshlrev_b32 v{t}, 16, v{r}')
            A(f'v_and_b32 v{t+1}, 0xffff0000, v{r}')
        for c in range(4):
            t = T + 2*c
            A(f'v_pk_add_f32 {v(t,2)}, {v(t,2)}, v[10:11]')
        for c in range(4):
            t = T + 2*c; r = XS + 4*i + c
            A(f'v_cvt_pk_bf16_f32 v{r}, v{t}, v{t+1}')
        for c in range(4):
            r = XS + 4*i + c; t = T + 2*c
            A(f'v_lshlrev_b32 v{t}, 16, v{r}')
            A(f'v_and_b32 v{t+1}, 0xffff0000, v{r}')
        for c in range(4):
            t = T + 2*c
            A(f'v_pk_mul_f32 {v(t,2)}, {v(t,2)}, v[14:15]')
        for c in range(4):
            t = T + 2*c; r = XS + 4*i + c
            A(f'v_cvt_pk_bf16_f32 v{r}, v{t}, v{t+1}')
        A(f'ds_write_b128 v6, {v(XS+4*i,4)} offset:{1024*i}')
    A('s_waitcnt lgkmcnt(0)')
    stamp()
    A('s_barrier')
    stamp()
    ACC = 128
    def acc(sx, mt): return ACC + (sx*4 + mt)*4
    AF = [32, 48]
    orientY = {0: True, 1: kind == 'A', 2: False}
    def rd(ks):
        for mt in range(4):
            A(f'ds_read_b128 {v(AF[ks&1]+4*mt,4)}, v7 offset:{mt*16384+ks*1024}')
    rd(0)
    for ks in range(16):
        if ks < 15:
            rd(ks + 1)
        A(f's_waitcnt vmcnt({45-3*ks}) lgkmcnt({4 if ks < 15 else 0})')
        for mt in range(4):
            for sx in range(3):
                w = a(4*(3*ks+sx), 4); x = v(AF[ks&1]+4*mt, 4)
                d = v(acc(sx, mt), 4)
                c = '0' if ks == 0 else d
                if orientY[sx]:
                    A(f'v_mfma_f32_16x16x32_bf16 {d}, {w}, {x}, {c}')
                else:
                    A(f'v_mfma_f32_16x16x32_bf16 {d}, {x}, {w}, {c}')
    stamp()
    srd(24, 6, QB, 0x600000)
    A('s_lshl_b32 s28, s21, 6')
    A('s_lshl_b32 s29, s9, 1')
    A('s_add_u32 s28, s28, s29')
    A('s_lshl_b32 s28, s28, 10')
    A(f's_add_u32 s29, s28, {hex(KB-QB)}')
    A(f's_add_u32 s30, s28, {hex(VB-QB)}')
    P = 64
    def phi(base, n):
        A(f's_mov_b32 s33, {hex(f2u(LOG2E))}')
        A(f's_mov_b32 s34, {hex(f2u(1e-6))}')
        for i in range(n):
            A(f'v_mul_f32 v{32+i}, s33, v{base+i}')
        for i in range(n):
            A(f'v_exp_f32 v{32+i}, v{32+i} clamp')
        for i in range(n):
            A(f'v_max_f32 v{base+i}, s34, v{base+i}')
        for i in range(n):
            A(f'v_add_f32 v{base+i}, v{base+i}, v{32+i}')
    def packY(sx, dst):
        for u in range(2):
            for m2 in range(2):
                b = acc(sx, 2*u + m2)
                A(f'v_cvt_pk_bf16_f32 v{dst+4*u+2*m2}, v{b}, v{b+1}')
                A(f'v_cvt_pk_bf16_f32 v{dst+4*u+2*m2+1}, v{b+2}, v{b+3}')
        for u in range(2):
            A(f'v_permlane16_swap_b32 v{dst+4*u}, v{dst+4*u+2}')
            A(f'v_permlane16_swap_b32 v{dst+4*u+1}, v{dst+4*u+3}')
    def packX(sx, dst):
        for u in range(2):
            for m2 in range(2):
                b = acc(sx, 2*u + m2)
                A(f'v_cvt_pk_bf16_f32 v{dst+4*u+2*m2}, v{b}, v{b+1}')
                A(f'v_cvt_pk_bf16_f32 v{dst+4*u+2*m2+1}, v{b+2}, v{b+3}')
    if kind == 'A':
        packY(0, P); packY(1, P+8); packX(2, P+16)
        for sx in range(3):
            for u in range(2):
                A(f'buffer_store_dwordx4 {v(P+8*sx+4*u,4)}, v5, s[24:27], s{28+sx} offen offset:{1024*u}')
    else:
        phi(acc(1, 0), 16)
        packX(1, P+8); packX(2, P+16)
        A('v_mov_b32 v28, s23'); A('v_mov_b32 v29, s23'); A('v_mov_b32 v30, s23'); A('v_mov_b32 v31, s23')
        A(f'v_mfma_f32_16x16x32_bf16 v[20:23], {v(P+16,4)}, {v(P+8,4)}, 0')
        A(f'v_mfma_f32_16x16x32_bf16 v[24:27], v[28:31], {v(P+8,4)}, 0')
        A(f'v_mfma_f32_16x16x32_bf16 v[20:23], {v(P+20,4)}, {v(P+12,4)}, v[20:23]')
        A(f'v_mfma_f32_16x16x32_bf16 v[24:27], v[28:31], {v(P+12,4)}, v[24:27]')
        A('s_add_u32 s36, s6, s8'); A('s_addc_u32 s37, s7, 0')
        A(f's_mov_b32 s38, {hex(KVSZ)}'); A('s_mov_b32 s39, 0x20000')
        A('s_mul_i32 s35, s21, 1088')
        A('v_and_b32 v9, 15, v1')
        A('v_lshlrev_b32 v9, 2, v9')
        A('v_lshl_add_u32 v9, v8, 8, v9')
        for r in range(4):
            A(f'buffer_atomic_add_f32 v{20+r}, v9, s[36:39], s35 offen offset:{64*r}')
        A('s_mov_b64 exec, 0xffff')
        A('buffer_atomic_add_f32 v24, v9, s[36:39], s35 offen offset:1024')
        A('s_mov_b64 exec, -1')
        phi(acc(0, 0), 16)
        packY(0, P)
        for u in range(2):
            A(f'buffer_store_dwordx4 {v(P+4*u,4)}, v5, s[24:27], s28 offen offset:{1024*u}')
    stamp()
    if STAMP: A('s_waitcnt vmcnt(0)')
    stamp_end(0 if kind == 'A' else 1)
    A.label(done)
    A('s_endpgm')

def gen_att():
    L = 'att_kernel'
    begin(L)
    A('s_cmp_ge_u32 s2, 256')
    A('s_cbranch_scc1 att_done')
    stamp_begin()
    A('s_load_dwordx2 s[6:7], s[0:1], 64')
    A('s_and_b32 s9, s2, 31')
    A('s_lshr_b32 s10, s2, 5')
    A('v_and_b32 v1, 63, v0')
    A('v_lshrrev_b32 v2, 6, v0')
    A('v_readfirstlane_b32 s11, v2')
    A('v_lshlrev_b32 v3, 4, v1')
    A('s_waitcnt lgkmcnt(0)')
    srd(12, 6, QB, 0x600000)
    A('s_lshl_b32 s16, s10, 3')
    A('s_lshl_b32 s17, s11, 1')
    A('s_add_u32 s18, s16, s17')
    A('s_sub_i32 s18, s18, 8')
    A('s_max_i32 s18, s18, 0')
    A('s_lshl_b32 s19, s9, 6')
    A('s_add_u32 s18, s18, s19')
    A('s_lshl_b32 s18, s18, 10')
    A(f's_add_u32 s20, s18, {hex(KB-QB)}')
    A(f's_add_u32 s21, s18, {hex(VB-QB)}')
    A('s_lshl_b32 s22, s11, 11')
    A('s_mov_b32 m0, s22')
    A('buffer_load_dwordx4 v3, s[12:15], s20 offen lds')
    A('buffer_load_dwordx4 v3, s[12:15], s20 offen offset:1024 lds')
    A('s_add_u32 s22, s22, 16384')
    A('s_mov_b32 m0, s22')
    A('buffer_load_dwordx4 v3, s[12:15], s21 offen lds')
    A('buffer_load_dwordx4 v3, s[12:15], s21 offen offset:1024 lds')
    A('s_add_u32 s23, s16, s11')
    A('s_add_u32 s24, s23, s19')
    A('s_lshl_b32 s24, s24, 10')
    Qr = 4
    A(f'buffer_load_dwordx4 {v(Qr,4)}, v3, s[12:15], s24 offen')
    A('s_mov_b32 s25, 0x3f803f80')
    for j in range(4): A(f'v_mov_b32 v{8+j}, s25')
    A('v_mov_b32 v12, 0x8000')
    A('ds_write_b128 v12, v[8:11]')
    A('v_and_b32 v13, 3, v1')
    A('v_bfe_u32 v14, v1, 2, 2')
    A('v_bfe_u32 v15, v1, 4, 1')
    A('v_lshl_add_u32 v13, v15, 2, v13')
    A('v_lshl_add_u32 v13, v14, 3, v13')
    A('v_and_b32 v14, 32, v1')
    A('v_add_u32 v13, v13, v14')
    A('v_lshlrev_b32 v13, 4, v13')
    A('v_lshl_add_u32 v13, v2, 10, v13')
    A('v_and_b32 v14, 15, v1')
    A('v_lshrrev_b32 v15, 5, v1')
    A('v_lshl_add_u32 v14, v15, 5, v14')
    A('v_lshlrev_b32 v14, 4, v14')
    A('v_lshl_add_u32 v14, v2, 10, v14')
    A('v_add_u32 v14, 16384, v14')
    A('v_and_b32 v16, 16, v1')
    A('v_cmp_eq_u32 s[26:27], 0, v16')
    A('v_mov_b32 v16, 0')
    A('v_mov_b32 v17, 0x100')
    A('v_cndmask_b32 v16, v16, v17, s[26:27]')
    A('v_cndmask_b32 v14, v12, v14, s[26:27]')
    A('v_mul_u32_u24 v17, 3, v16')
    A('v_and_b32 v18, 31, v1')
    A('v_lshlrev_b32 v19, 3, v15')
    A('v_sub_u32 v18, v18, v19')
    MS = 32
    for r in range(16):
        m, aa, b = r >> 3, (r >> 2) & 1, r & 3
        A(f'v_cmp_le_i32 {s(MS+2*r,2)}, {16*aa+4*m+b}, v18')
    MB = 20
    A('v_mov_b32 v28, 0xffff'); A('v_mov_b32 v29, 0xffff0000')
    for jj in range(8):
        A(f'v_cndmask_b32 v{MB+jj}, 0, v28, {s(MS+4*jj,2)}')
        A(f'v_cndmask_b32 v30, 0, v29, {s(MS+4*jj+2,2)}')
        A(f'v_or_b32 v{MB+jj}, v{MB+jj}, v30')
    stamp()
    A('s_waitcnt vmcnt(0) lgkmcnt(0)')
    stamp()
    A('s_barrier')
    stamp()
    KF = 32
    S0 = 96
    for i in range(9):
        A(f'ds_read_b128 {v(KF+4*i,4)}, v13 offset:{1024*i}')
    for i in range(9):
        A(f's_waitcnt lgkmcnt({8-i})')
        A(f'v_mfma_f32_32x32x16_bf16 {v(S0+16*i,16)}, {v(KF+4*i,4)}, {v(Qr,4)}, 0')
    VF = 32
    A('s_cmp_lg_u32 s10, 0')
    A.flush()
    A('s_cbranch_scc1 att_valid')
    A(f's_mov_b32 s28, {hex(f2u(-1e30))}')
    for i in range(8):
        A(f's_cmp_ge_u32 s11, {8-i}')
        A('s_cbranch_scc1 att_valid')
        for r in range(16):
            A(f'v_mov_b32 v{S0+16*i+r}, s28')
    A.label('att_valid')
    stamp()
    order = [1, 2, 3, 4, 5, 6, 7, 0, 8]
    def vread(i, m, dst):
        A(f'v_mad_u32_u24 v31, v16, {4*i+m}, v14')
        A(f'ds_read_b128 {v(dst,4)}, v31')
    slot = {}
    n = 0
    for i in order[:8]:
        for m in range(2):
            slot[(i, m)] = VF + 4*n; vread(i, m, VF + 4*n); n += 1
    for r in range(16):
        A(f'v_cndmask_b32 v{S0+r}, v{S0+r}, v{S0+128+r}, {s(MS+2*r,2)}')
    for m in range(2):
        slot[(8, m)] = S0 + 128 + 4*m; vread(8, m, S0 + 128 + 4*m)
    MX = 240
    for c in range(4):
        b = S0 + 32*c
        A(f'v_max3_f32 v{MX+c}, v{b}, v{b+1}, v{b+2}')
        k = 3
        while k + 1 < 32:
            A(f'v_max3_f32 v{MX+c}, v{MX+c}, v{b+k}, v{b+k+1}')
            k += 2
        A(f'v_max_f32 v{MX+c}, v{MX+c}, v{b+31}')
    A(f'v_max3_f32 v{MX}, v{MX}, v{MX+1}, v{MX+2}')
    A(f'v_max_f32 v{MX}, v{MX}, v{MX+3}')
    A(f'v_mov_b32 v{MX+1}, v{MX}')
    A(f'v_permlane32_swap_b32 v{MX}, v{MX+1}')
    A(f'v_max_f32 v{MX}, v{MX}, v{MX+1}')
    C = 0.25 * LOG2E
    A(f's_mov_b32 s29, {hex(f2u(C))}')
    A(f'v_mul_f32 v{MX}, {hex(f2u(-C))}, v{MX}')
    ACC = 240 + 0
    A(f'v_mov_b32 v30, v{MX}')
    ACC = 240
    stamp()
    first = True
    for i in order[:8]:
        b = S0 + 16*i
        for r in range(16):
            A(f'v_fma_f32 v{b+r}, v{b+r}, s29, v30')
        for r in range(16):
            A(f'v_exp_f32 v{b+r}, v{b+r}')
        for jj in range(8):
            A(f'v_cvt_pk_bf16_f32 v{b+jj}, v{b+2*jj}, v{b+2*jj+1}')
        if first:
            A('s_waitcnt lgkmcnt(0)')
        if i == 0:
            for jj in range(8):
                A(f'v_and_b32 v{b+8+jj}, v{b+jj}, v{MB+jj}')
            for jj in range(8):
                A(f'v_bfi_b32 v{b+jj}, v{MB+jj}, 0, v{b+jj}')
            for m in range(2):
                A(f'v_mfma_f32_32x32x16_bf16 {v(ACC,16)}, {v(slot[(8,m)],4)}, {v(b+8+4*m,4)}, {v(ACC,16)}')
        for m in range(2):
            c = '0' if first else v(ACC, 16)
            A(f'v_mfma_f32_32x32x16_bf16 {v(ACC,16)}, {v(slot[(i,m)],4)}, {v(b+4*m,4)}, {c}')
            first = False
    A(f'v_rcp_f32 v31, v{ACC+8}')
    for r in range(8):
        A(f'v_mul_f32 v{ACC+r}, v{ACC+r}, v31')
    for jj in range(4):
        A(f'v_cvt_pk_bf16_f32 v{8+jj}, v{ACC+2*jj}, v{ACC+2*jj+1}')
    srd(12, 6, OB, 0x200000)
    A('s_lshl_b32 s24, s23, 5')
    A('s_add_u32 s24, s24, s9')
    A('s_lshl_b32 s24, s24, 10')
    A('buffer_store_dwordx4 v[8:11], v3, s[12:15], s24 offen')
    stamp()
    if STAMP: A('s_waitcnt vmcnt(0)')
    stamp_end(2)
    A.label('att_done')
    A('s_endpgm')
    kernels.append((L, 256, 256, 72))

def gen_out(kind):
    body = f'out{kind}_body'; done = f'out{kind}_done'
    cfg = [('1', None, X1, 0), ('2', X2, X3, 0)] if kind == 'A' else [('1', X1, X2, KV1), ('2', X3, None, KV2)]
    for idx, (tag, xin, xout, kvoff) in enumerate(cfg):
        L = f'out{kind}{tag}_kernel'
        begin(L)
        A('s_cmp_ge_u32 s2, 256')
        A(f's_cbranch_scc1 {done}')
        A('s_load_dwordx2 s[6:7], s[0:1], 64')
        if xin is None: A('s_load_dwordx2 s[4:5], s[0:1], 0')
        if xout is None: A('s_load_dwordx2 s[40:41], s[0:1], 48')
        A('s_waitcnt lgkmcnt(0)')
        if xin is not None:
            A(f's_add_u32 s4, s6, {hex(xin)}'); A('s_addc_u32 s5, s7, 0')
        if xout is not None:
            A(f's_add_u32 s40, s6, {hex(xout)}'); A('s_addc_u32 s41, s7, 0')
        A(f's_mov_b32 s8, {hex(kvoff)}')
        if idx == 0:
            A(f's_branch {body}')
        kernels.append((L, 256, 256, 64))
    A.label(body)
    stamp_begin()
    A('s_lshr_b32 s9, s2, 3')
    A('s_and_b32 s10, s2, 7')
    A('v_and_b32 v1, 63, v0')
    A('v_lshrrev_b32 v2, 6, v0')
    A('v_readfirstlane_b32 s11, v2')
    A('v_lshlrev_b32 v3, 4, v1')
    srd(12, 6, OB if kind == 'A' else QB, 0x200000)
    srd(16, 6, WOA if kind == 'A' else WOB, 0x80000)
    OF = 16
    WF = 80
    ACC = 144
    KVF = 208
    nld = 0
    if kind == 'B':
        A('s_add_u32 s36, s6, s8'); A('s_addc_u32 s37, s7, 0')
        A(f's_mov_b32 s38, {hex(KVSZ)}'); A('s_mov_b32 s39, 0x20000')
        A('v_and_b32 v4, 31, v1')
        A('v_min_u32 v4, 16, v4')
        A('v_lshlrev_b32 v4, 6, v4')
        A('v_lshrrev_b32 v5, 5, v1')
        A('v_lshl_add_u32 v4, v5, 5, v4')
        A('s_mul_i32 s35, s11, %d' % (8 * 1088))
        for hh in range(8):
            if hh == 3 or hh == 6:
                A('s_add_u32 s35, s35, %d' % (3 * 1088))
            o = (hh % 3) * 1088
            A(f'buffer_load_dwordx4 {v(ACC+8*hh,4)}, v4, s[36:39], s35 offen offset:{o}')
            A(f'buffer_load_dwordx4 {v(ACC+8*hh+4,4)}, v4, s[36:39], s35 offen offset:{o+16}')
        A('s_lshl_b32 s20, s11, 9')
        A('s_lshl_b32 s21, s9, 1')
        A('s_add_u32 s20, s20, s21')
        A('s_lshl_b32 s20, s20, 10')
        for hh in range(8):
            for u in range(2):
                A(f'buffer_load_dwordx4 {v(OF+(u*8+hh)*4,4)}, v3, s[12:15], s20 offen offset:{1024*u}')
            A('s_add_u32 s20, s20, 65536')
    else:
        A('s_lshl_b32 s20, s9, 6')
        A('s_lshl_b32 s21, s11, 3')
        A('s_add_u32 s20, s20, s21')
        A('s_lshl_b32 s20, s20, 10')
        A('s_add_u32 s21, s20, 32768')
        for hh in range(8):
            if hh == 4:
                A('s_add_u32 s20, s20, 4096'); A('s_add_u32 s21, s21, 4096')
            for u in range(2):
                A(f'buffer_load_dwordx4 {v(OF+(u*8+hh)*4,4)}, v3, s[12:15], s{20+u} offen offset:{1024*(hh%4)}')
    A('s_lshl_b32 s22, s10, 5')
    A('s_lshl_b32 s23, s11, 3')
    A('s_add_u32 s22, s22, s23')
    A('s_lshl_b32 s22, s22, 11')
    for f in range(16):
        if f % 4 == 0 and f:
            A('s_add_u32 s22, s22, 4096')
        A(f'buffer_load_dwordx4 {v(WF+4*f,4)}, v3, s[16:19], s22 offen offset:{1024*(f%4)}')
    srd(24, 4, 0, 0x200000)
    srd(28, 40, 0, 0x200000)
    A('v_and_b32 v6, 31, v1')
    A('v_lshlrev_b32 v6, 10, v6')
    A('v_lshrrev_b32 v7, 5, v1')
    A('v_lshl_add_u32 v6, v7, 3, v6')
    A('s_lshr_b32 s32, s11, 1')
    A('s_and_b32 s33, s11, 1')
    A('s_lshl_b32 s34, s9, 16')
    A('s_lshl_b32 s32, s32, 15')
    A('s_add_u32 s34, s34, s32')
    A('s_lshl_b32 s32, s10, 7')
    A('s_add_u32 s34, s34, s32')
    A('s_lshl_b32 s33, s33, 6')
    A('s_add_u32 s34, s34, s33')
    RES = 208
    for aa in range(4):
        A(f'buffer_load_dwordx2 {v(RES+2*aa,2)}, v6, s[24:27], s34 offen offset:{16*aa}')
    stamp()
    if kind == 'B':
        KVP = 216
        A('s_waitcnt vmcnt(36)')
        for hh in range(8):
            for jj in range(4):
                A(f'v_cvt_pk_bf16_f32 v{KVP+4*hh+jj}, v{ACC+8*hh+2*jj}, v{ACC+8*hh+2*jj+1}')
        A(f's_mov_b32 s42, {hex(f2u(1e-6))}')
        k = 0
        jobs = [(hh, u) for hh in range(8) for u in range(2)]
        def fin(idx):
            hh, u = jobs[idx]; b = ACC + 16*(idx % 4); o = OF + (u*8+hh)*4
            A(f'v_add_f32 v8, s42, v{b+8}')
            A('v_rcp_f32 v8, v8')
            for r in range(8):
                A(f'v_mul_f32 v{b+r}, v{b+r}, v8')
            for jj in range(4):
                A(f'v_cvt_pk_bf16_f32 v{o+jj}, v{b+2*jj}, v{b+2*jj+1}')
        for idx, (hh, u) in enumerate(jobs):
            A(f's_waitcnt vmcnt({35-idx})')
            b = ACC + 16*(idx % 4)
            A(f'v_mfma_f32_32x32x16_bf16 {v(b,16)}, {v(KVP+4*hh,4)}, {v(OF+(u*8+hh)*4,4)}, 0')
            if idx >= 2:
                fin(idx - 2)
        fin(14); fin(15)
    stamp()
    for hh in range(8):
        A(f's_waitcnt vmcnt({4+14-2*hh})')
        if hh in (0, 7): stamp()
        for u in range(2):
            for nt in range(2):
                d = v(ACC + (u*2+nt)*16, 16)
                c = '0' if hh == 0 else d
                A(f'v_mfma_f32_32x32x16_bf16 {d}, {v(WF+(hh*2+nt)*4,4)}, {v(OF+(u*8+hh)*4,4)}, {c}')
    A('v_lshl_add_u32 v8, v2, 12, v3')
    A('v_lshl_add_u32 v9, v2, 14, v3')
    for q in range(4):
        for i in range(4):
            A(f'ds_write_b128 v8, {v(ACC+16*q+4*i,4)} offset:{q*16384+i*1024}')
    A('s_waitcnt lgkmcnt(0)')
    stamp()
    A('s_barrier')
    stamp()
    for sw in range(4):
        for i in range(4):
            A(f'ds_read_b128 {v(16+16*sw+4*i,4)}, v9 offset:{sw*4096+i*1024}')
    A('s_waitcnt lgkmcnt(8)')
    for r in range(16): A(f'v_add_f32 v{16+r}, v{16+r}, v{32+r}')
    A('s_waitcnt lgkmcnt(0)')
    for r in range(16): A(f'v_add_f32 v{48+r}, v{48+r}, v{64+r}')
    for r in range(16): A(f'v_add_f32 v{16+r}, v{16+r}, v{48+r}')
    for jj in range(8): A(f'v_cvt_pk_bf16_f32 v{32+jj}, v{16+2*jj}, v{17+2*jj}')
    A('s_waitcnt vmcnt(0)')
    for jj in range(8):
        A(f'v_lshlrev_b32 v{16+2*jj}, 16, v{32+jj}')
        A(f'v_and_b32 v{17+2*jj}, 0xffff0000, v{32+jj}')
        A(f'v_lshlrev_b32 v{48+2*jj}, 16, v{RES+jj}')
        A(f'v_and_b32 v{49+2*jj}, 0xffff0000, v{RES+jj}')
    for r in range(16): A(f'v_add_f32 v{16+r}, v{16+r}, v{48+r}')
    PERT = float(os.environ.get('PERT', '0'))
    if PERT and kind == 'B':
        A(f's_cmp_eq_u32 s8, {hex(KV2)}')
        A(f's_cselect_b32 s43, {hex(f2u(PERT))}, 0')
        if os.environ.get('PERT1'):
            A('s_cmp_eq_u32 s2, 5'); A('s_cselect_b32 s43, s43, 0')
        for r in range(16): A(f'v_add_f32 v{16+r}, s43, v{16+r}')
    for jj in range(8): A(f'v_cvt_pk_bf16_f32 v{32+jj}, v{16+2*jj}, v{17+2*jj}')
    for aa in range(4):
        A(f'buffer_store_dwordx2 {v(32+2*aa,2)}, v6, s[28:31], s34 offen offset:{16*aa}')
    stamp()
    if STAMP: A('s_waitcnt vmcnt(0)')
    stamp_end(3 if kind == 'A' else 4)
    A.label(done)
    A('s_endpgm')

gen_pack(); gen_qkv('A'); gen_att(); gen_out('A'); gen_qkv('B'); gen_out('B')

launches = [
    ('pack_kernel', 4096, 64, 0),
    ('qkvA1_kernel', 256, 256, 65536), ('att_kernel', 256, 512, 32768 + 64), ('outA1_kernel', 256, 256, 65536),
    ('qkvB1_kernel', 256, 256, 65536), ('outB1_kernel', 256, 256, 65536),
    ('qkvA2_kernel', 256, 256, 65536), ('att_kernel', 256, 512, 32768 + 64), ('outA2_kernel', 256, 256, 65536),
    ('qkvB2_kernel', 256, 256, 65536), ('outB2_kernel', 256, 256, 65536),
]
extra = int(sys.argv[2]) if len(sys.argv) > 2 else 0
head = '; generated by work/gen1.py\n'
for k, g, b, l in launches:
    head += f'; @launch kernel={k} grid=({g},1,1) block=({b},1,1) lds={l}\n'
for i in range(extra):
    head += f'; @launch kernel=nop_kernel grid=(256,1,1) block=(256,1,1) lds=0\n'
if extra:
    begin('nop_kernel'); A('s_endpgm'); kernels.append(('nop_kernel', 8, 8, 16))
txt = head + '.amdgcn_target "amdgcn-amd-amdhsa--gfx950"\n.text\n' + A.render()
txt += '.section .rodata,"a"\n'
for L, nv, acc, ns in kernels:
    txt += f'''.p2align 6
.amdhsa_kernel {L}
  .amdhsa_next_free_vgpr {nv}
  .amdhsa_next_free_sgpr {102 if STAMP else ns}
  .amdhsa_accum_offset {acc}
  .amdhsa_group_segment_fixed_size 0
  .amdhsa_kernarg_size 72
  .amdhsa_user_sgpr_count 2
  .amdhsa_user_sgpr_kernarg_segment_ptr 1
  .amdhsa_system_sgpr_workgroup_id_x 1
  .amdhsa_float_denorm_mode_32 3
.end_amdhsa_kernel
'''
out = sys.argv[1] if len(sys.argv) > 1 else f'cdna_kernels/{NAME}.s'
open(out, 'w').write(txt)
print('wrote', out, 'nops', A.nops, 'lines', txt.count('\n'))
```
